```python
import torch

def _softmax(x, axis=-1):
    return torch.softmax(x, dim=axis)
def _gelu(x):
    return torch.nn.functional.gelu(x, approximate="tanh")
def _silu(x):
    return torch.nn.functional.silu(x)
def _sigmoid(x):
    return torch.sigmoid(x)
def _layernorm(x, axis=-1, eps=1e-5):
    m = x.mean(dim=axis, keepdim=True)
    v = x.var(dim=axis, keepdim=True, unbiased=False)
    return (x - m) / torch.sqrt(v + eps)
def _scatter_add(tgt, idx, src, axis=0):
    return tgt.clone().index_add_(axis, idx, src)
def _segment_sum(src, seg, n):
    out = torch.zeros((n,) + src.shape[1:], dtype=src.dtype)
    return out.index_add_(0, seg, src)
def _pad(x, pw):
    flat = tuple(v for pair in reversed(pw) for v in pair)
    return torch.nn.functional.pad(x, flat)

kernel_name = 'interleave_layers__gqa_block_cached__dense_activation_silu__decode'

def setup_inputs():

    _w = (lambda a: (lambda t: t.to(torch.bfloat16) if t.is_floating_point() else t)(torch.as_tensor(a)))
    def _A_setup():
        B, Sq, D = 8, 1, 512
        Hq, Hkv, Sk, Dh = 32, 32, 4096, 128
        assert Hq % Hkv == 0, (Hq, Hkv)
        return {
            "x": _w((lambda *s: torch.randn(*s, dtype=torch.bfloat16) * 0.1)(B, Sq, D)),
            "k_cache": _w((lambda *s: torch.randn(*s, dtype=torch.bfloat16) * 0.8)(B, Hkv, Sk, Dh)),
            "v_cache": _w((lambda *s: torch.randn(*s, dtype=torch.bfloat16) * 1.6)(B, Hkv, Sk, Dh)),
            "wq": _w((lambda *s: torch.randn(*s, dtype=torch.bfloat16) * 0.8)(D, Hq * Dh) * (D ** -0.5)),
            "wo": _w((lambda *s: torch.randn(*s, dtype=torch.bfloat16) * 1.6)(Hq * Dh, D) * ((Hq * Dh) ** -0.5)),
        }
    _A_in = _A_setup()

    def _B_setup():
        B, S, D, F = 8, 1, 512, 1376
        return {
            "x": _w((lambda *s: torch.randn(*s, dtype=torch.bfloat16) * 0.1)(B, S, D)),
            "w1": _w((lambda *s: torch.randn(*s, dtype=torch.bfloat16) * 0.4)(D, F) * (D ** -0.5)),
            "w2": _w((lambda *s: torch.randn(*s, dtype=torch.bfloat16) * 0.4)(F, D) * (F ** -0.5)),
        }
    _B_in = _B_setup()

    return {
        "A_x": _A_in["x"],
        "A_k_cache": _A_in["k_cache"],
        "A_v_cache": _A_in["v_cache"],
        "A_wq": _A_in["wq"],
        "A_wo": _A_in["wo"],
        "B_x": _B_in["x"],
        "B_w1": _B_in["w1"],
        "B_w2": _B_in["w2"],
    }

def reference(A_x, A_k_cache, A_v_cache, A_wq, A_wo, B_x, B_w1, B_w2):
    def _A_ref(x, k_cache, v_cache, wq, wo):
        B, Sq, D = x.shape
        Hq, Dh = 32, 128
        Hkv = k_cache.shape[1]
        rep = Hq // Hkv
        q = (lambda x, *d: x.permute(*d))((x @ wq).reshape(B, Sq, Hq, Dh), 0, 2, 1, 3)
        k = (lambda x, n, axis: torch.repeat_interleave(x, n, dim=axis))(k_cache, rep, axis=1)
        v = (lambda x, n, axis: torch.repeat_interleave(x, n, dim=axis))(v_cache, rep, axis=1)
        scores = torch.einsum("bhqd,bhkd->bhqk", q, k) * (Dh ** -0.5)
        p = _softmax(scores, axis=-1)
        o = torch.einsum("bhqk,bhkd->bhqd", p, v)
        return (lambda x, *d: x.permute(*d))(o, 0, 2, 1, 3).reshape(B, Sq, Hq * Dh) @ wo

    def _B_ref(x, w1, w2):
        h = torch.einsum("bsd,df->bsf", x, w1)
        h = _silu(h)
        out = torch.einsum("bsf,fd->bsd", h, w2)
        return out

    x = A_x
    x = x + _A_ref(_layernorm(x, axis=-1), A_k_cache, A_v_cache, A_wq, A_wo)
    x = x + _B_ref(_layernorm(x, axis=-1), B_w1, B_w2)
    x = x + _A_ref(_layernorm(x, axis=-1), A_k_cache, A_v_cache, A_wq, A_wo)
    x = x + _B_ref(_layernorm(x, axis=-1), B_w1, B_w2)
    return x
```

```python
import sys
NAME = "interleave_layers__gqa_block_cached__dense_activation_silu__decode"
HDR = open(f"cdna_kernels/{NAME}.s.ref").read().split("; Override launch geometry")[0]

out = []
def e(s=""):
    out.append(s)

WS_Q = 0
WS_PART = 0x10000
WS_PY = 0xA0000
WS_PZ = 0xC0000
WS_XA = 0xD0000
WS_XB = 0xD4000
WS_H = 0xD8000
SPLIT = 4
C_SCALE = 1.4426950408889634 / (128 ** 0.5)
import struct
def f2u(f):
    return struct.unpack("<I", struct.pack("<f", f))[0]

kernels = []
def begin(name):
    e(".p2align 8")
    e(f".globl {name}")
    e(f".type {name},@function")
    e(f"{name}:")
def load_ptrs():
    e("s_load_dwordx16 s[8:23], s[0:1], 0")
    e("s_load_dwordx4 s[24:27], s[0:1], 64")
    e("s_load_dwordx2 s[28:29], s[0:1], 80")
def end(name, vgpr, sgpr=64):
    e("s_endpgm")
    kernels.append((name, vgpr, sgpr))

def gen_attn():
    name = "attn_kernel"
    begin(name)
    e("s_cmp_ge_u32 s2, 1024")
    e("s_cbranch_scc1 attn_done")
    load_ptrs()
    e("s_lshr_b32 s3, s2, 2")
    e("s_and_b32 s4, s2, 3")
    e("v_lshrrev_b32 v1, 6, v0")
    e("v_and_b32 v2, 63, v0")
    e("s_nop 0")
    e("v_readfirstlane_b32 s5, v1")
    e("s_waitcnt lgkmcnt(0)")
    e("s_lshl_b32 s6, s3, 20")
    e("s_lshl_b32 s7, s4, 18")
    e("s_add_u32 s6, s6, s7")
    e("s_lshl_b32 s7, s5, 16")
    e("s_add_u32 s6, s6, s7")
    e("s_add_u32 s30, s10, s6")
    e("s_addc_u32 s31, s11, 0")
    e("s_add_u32 s32, s12, s6")
    e("s_addc_u32 s33, s13, 0")
    e("v_and_b32 v3, 15, v2")
    e("v_lshlrev_b32 v3, 4, v3")
    e("s_lshl_b32 s7, s3, 8")
    e("v_add_u32 v3, s7, v3")
    e(f"global_load_dwordx4 v[4:7], v3, s[28:29] offset:{WS_Q}")
    e("v_lshlrev_b32 v8, 4, v2")
    e("v_add_u32 v9, 4096, v8")
    e("v_mov_b32 v10, 0xff800000")
    for r in range(11, 20):
        e(f"v_mov_b32 v{r}, 0")
    e(f"s_mov_b32 s34, 0x{f2u(C_SCALE):08x}")
    e("s_mov_b32 s35, 0")
    KB, VB, SB = 32, 64, 20
    e("attn_loop:")
    for i in range(8):
        va = 8 if i < 4 else 9
        e(f"global_load_dwordx4 v[{KB+4*i}:{KB+4*i+3}], v{va}, s[30:31] offset:{(i%4)*1024} nt")
    for i in range(8):
        va = 8 if i < 4 else 9
        e(f"global_load_dwordx4 v[{VB+4*i}:{VB+4*i+3}], v{va}, s[32:33] offset:{(i%4)*1024} nt")
    e("s_add_u32 s30, s30, 8192")
    e("s_addc_u32 s31, s31, 0")
    e("s_add_u32 s32, s32, 8192")
    e("s_addc_u32 s33, s33, 0")
    e("s_waitcnt vmcnt(8)")
    for j in range(4):
        for i in range(8):
            if j == 0:
                e(f"v_dot2_f32_bf16 v{SB+i}, v{KB+4*i}, v4, 0")
            else:
                e(f"v_dot2_f32_bf16 v{SB+i}, v{KB+4*i+j}, v{4+j}, v{SB+i}")
    e("s_nop 2")
    for ror in (8, 4, 2, 1):
        for i in range(8):
            e(f"v_add_f32_dpp v{SB+i}, v{SB+i}, v{SB+i} row_ror:{ror} row_mask:0xf bank_mask:0xf")
    e(f"v_max3_f32 v28, v{SB}, v{SB+1}, v10")
    e(f"v_max3_f32 v29, v{SB+2}, v{SB+3}, v{SB+4}")
    e(f"v_max3_f32 v30, v{SB+5}, v{SB+6}, v{SB+7}")
    e("v_max3_f32 v28, v28, v29, v30")
    e("v_sub_f32 v29, v10, v28")
    e("v_mul_f32 v29, s34, v29")
    e("v_exp_f32 v29, v29")
    e("v_mul_f32 v30, s34, v28")
    e("v_mov_b32 v10, v28")
    for i in range(8):
        e(f"v_fma_f32 v{SB+i}, v{SB+i}, s34, -v30")
    for i in range(8):
        e(f"v_exp_f32 v{SB+i}, v{SB+i}")
    e("v_mul_f32 v11, v11, v29")
    for r in range(12, 20):
        e(f"v_mul_f32 v{r}, v{r}, v29")
    for i in range(8):
        e(f"v_add_f32 v11, v11, v{SB+i}")
    e("s_waitcnt vmcnt(0)")
    for i in range(8):
        for j in range(4):
            e(f"v_lshlrev_b32 v28, 16, v{VB+4*i+j}")
            e(f"v_and_b32 v29, 0xffff0000, v{VB+4*i+j}")
            e(f"v_fmac_f32 v{12+2*j}, v{SB+i}, v28")
            e(f"v_fmac_f32 v{13+2*j}, v{SB+i}, v29")
    e("s_add_u32 s35, s35, 1")
    e("s_cmp_lt_u32 s35, 8")
    e("s_cbranch_scc1 attn_loop")
    e("v_lshrrev_b32 v20, 4, v0")
    e("v_lshlrev_b32 v21, 9, v20")
    e("v_and_b32 v22, 15, v0")
    e("v_lshlrev_b32 v22, 5, v22")
    e("v_add_u32 v21, v21, v22")
    e("ds_write_b128 v21, v[12:15]")
    e("ds_write_b128 v21, v[16:19] offset:16")
    e("v_mul_f32 v10, s34, v10")
    e("v_lshlrev_b32 v22, 3, v20")
    e("ds_write_b64 v22, v[10:11] offset:8192")
    e("s_waitcnt lgkmcnt(0)")
    e("s_barrier")
    e("v_cmp_gt_u32 vcc, 128, v0")
    e("s_and_saveexec_b64 s[36:37], vcc")
    e("s_cbranch_execz attn_done")
    e("v_mov_b32 v1, 0")
    for i in range(8):
        e(f"ds_read_b128 v[{32+4*i}:{35+4*i}], v1 offset:{8192+16*i}")
    e("v_lshlrev_b32 v2, 2, v0")
    for i in range(16):
        e(f"ds_read_b32 v{64+i}, v2 offset:{512*i}")
    e("s_waitcnt lgkmcnt(0)")
    e("v_mov_b32 v3, v32")
    for i in range(1, 16):
        e(f"v_max_f32 v3, v3, v{32+2*i}")
    e("v_mov_b32 v4, 0")
    e("v_mov_b32 v5, 0")
    for i in range(16):
        e(f"v_sub_f32 v6, v{32+2*i}, v3")
        e("v_exp_f32 v6, v6")
        e("s_nop 0")
        e(f"v_fmac_f32 v4, v6, v{33+2*i}")
        e(f"v_fmac_f32 v5, v6, v{64+i}")
    e("s_mul_i32 s7, s2, 528")
    e(f"s_add_u32 s7, s7, {WS_PART}")
    e("v_add_u32 v2, s7, v2")
    e("global_store_dword v2, v5, s[28:29] offset:16")
    e("v_cmp_eq_u32 vcc, 0, v0")
    e("s_and_saveexec_b64 s[38:39], vcc")
    e("v_mov_b32 v7, s7")
    e("v_mov_b32 v8, v3")
    e("v_mov_b32 v9, v4")
    e("global_store_dwordx2 v7, v[8:9], s[28:29]")
    e("attn_done:")
    end(name, 96)

LDS_X = 0
LDS_T = 16384
LDS_R = 32768

def round_bf16(v, tmp):
    e(f"v_cvt_pk_bf16_f32 v{tmp}, v{v}, v{v}")
    e(f"v_lshlrev_b32 v{v}, 16, v{tmp}")

def gen_gemv(name, nwg, wslot, ldw, CB, nsteps, rowfn, loader, epilogue, kvalid=None):
    begin(name)
    e(f"s_cmp_ge_u32 s2, {nwg}")
    e(f"s_cbranch_scc1 {name}_done")
    load_ptrs()
    lpr = CB // 8
    rpi = 64 // lpr
    e("v_lshrrev_b32 v1, 6, v0")
    e("v_and_b32 v2, 63, v0")
    sh = {4: 2, 8: 3}[lpr]
    e(f"v_lshrrev_b32 v3, {sh}, v2")
    e(f"v_and_b32 v4, {lpr-1}, v2")
    e(f"v_mul_u32_u24 v1, {rpi}, v1")
    e("v_add_u32 v1, v1, v3")
    rowfn()
    e("s_waitcnt lgkmcnt(0)")
    for st in range(nsteps):
        e(f"v_add_u32 v5, {st*rpi*4}, v1")
        if kvalid is not None:
            e(f"v_min_u32 v5, {kvalid-1}, v5")
        e("v_add_u32 v5, s40, v5")
        e(f"s_mov_b32 s42, {ldw}")
        e("v_mul_lo_u32 v5, v5, s42")
        e("v_lshl_add_u32 v5, v4, 4, v5")
        e("v_add_u32 v5, s41, v5")
        e(f"global_load_dwordx4 v[{64+4*st}:{67+4*st}], v5, s[{wslot}:{wslot+1}]")
    loader()
    for r in range(128, 192):
        e(f"v_mov_b32 v{r}, 0")
    e("v_lshlrev_b32 v5, 5, v1")
    for st in range(nsteps):
        e(f"ds_read_b128 v[8:11], v5 offset:{LDS_T + st*rpi*4*32}")
        e(f"ds_read_b128 v[12:15], v5 offset:{LDS_T + st*rpi*4*32 + 16}")
        e(f"s_waitcnt vmcnt({nsteps-1-st}) lgkmcnt(0)")
        for j in range(4):
            e(f"v_lshlrev_b32 v{16+2*j}, 16, v{64+4*st+j}")
            e(f"v_and_b32 v{17+2*j}, 0xffff0000, v{64+4*st+j}")
        for b in range(8):
            for j in range(8):
                e(f"v_fmac_f32 v{128+8*b+j}, v{8+b}, v{16+j}")
    e("v_lshlrev_b32 v5, 8, v0")
    for i in range(16):
        e(f"ds_write_b128 v5, v[{128+4*i}:{131+4*i}] offset:{LDS_R+16*i}")
    e("s_waitcnt lgkmcnt(0)")
    e("s_barrier")
    nout = 8 * CB // 256
    nsum = 256 // lpr
    for o in range(nout):
        e(f"v_add_u32 v6, {256*o}, v0")
        e(f"v_lshrrev_b32 v7, {CB.bit_length()-1}, v6")
        e(f"v_and_b32 v6, {CB-1}, v6")
        e("v_lshrrev_b32 v8, 3, v6")
        e("v_and_b32 v9, 7, v6")
        e("v_lshlrev_b32 v8, 8, v8")
        e("v_lshl_add_u32 v8, v7, 5, v8")
        e("v_lshl_add_u32 v8, v9, 2, v8")
        e(f"v_add_u32 v8, {LDS_R}, v8")
        for i in range(nsum):
            e(f"ds_read_b32 v{64+i}, v8 offset:{i*lpr*256}")
        e("s_waitcnt lgkmcnt(0)")
        e("v_mov_b32 v10, v64")
        for i in range(1, nsum):
            e(f"v_add_f32 v10, v10, v{64+i}")
        epilogue()
    e(f"{name}_done:")
    end(name, 192)

def loader_ln(base_kind, npart, part_off, base_off, save_off):
    def f():
        e("v_lshrrev_b32 v20, 5, v0")
        e("v_and_b32 v21, 31, v0")
        e("v_lshlrev_b32 v22, 11, v20")
        e("v_lshl_add_u32 v22, v21, 6, v22")
        if base_kind == "bf16":
            e("v_lshrrev_b32 v23, 1, v22")
            e("global_load_dwordx4 v[40:43], v23, s[8:9]")
            e("global_load_dwordx4 v[44:47], v23, s[8:9] offset:16")
            e("s_waitcnt vmcnt(0)")
            for j in range(8):
                e(f"v_lshlrev_b32 v{24+2*j}, 16, v{40+j}")
                e(f"v_and_b32 v{25+2*j}, 0xffff0000, v{40+j}")
        else:
            e(f"v_add_u32 v23, {base_off}, v22")
            for j in range(4):
                e(f"global_load_dwordx4 v[{24+4*j}:{27+4*j}], v23, s[28:29] offset:{16*j}")
            e("s_waitcnt vmcnt(0)")
        if npart:
            for r in range(40, 56):
                e(f"v_mov_b32 v{r}, 0")
            for p in range(npart):
                e(f"v_add_u32 v23, {part_off + p*16384}, v22")
                for j in range(4):
                    e(f"global_load_dwordx4 v[{192+4*j}:{195+4*j}], v23, s[28:29] offset:{16*j}")
                e("s_waitcnt vmcnt(0)")
                for j in range(16):
                    e(f"v_add_f32 v{40+j}, v{40+j}, v{192+j}")
            for j in range(16):
                round_bf16(40+j, 56)
                e(f"v_add_f32 v{24+j}, v{24+j}, v{40+j}")
                round_bf16(24+j, 56)
        if save_off is not None:
            e("s_cmp_lg_u32 s2, 0")
            e(f"s_cbranch_scc1 .Lskip_save_{len(out)}")
            lab = f".Lskip_save_{len(out)-1}"
            e(f"v_add_u32 v23, {save_off}, v22")
            for j in range(4):
                e(f"global_store_dwordx4 v23, v[{24+4*j}:{27+4*j}], s[28:29] offset:{16*j}")
            e(f"{lab}:")
        e("v_mov_b32 v40, v24")
        for j in range(1, 16):
            e(f"v_add_f32 v40, v40, v{24+j}")
        def red(v):
            e("s_nop 1")
            for ror in (8, 4, 2, 1):
                e(f"v_add_f32_dpp v{v}, v{v}, v{v} row_ror:{ror} row_mask:0xf bank_mask:0xf")
                e("s_nop 1")
            e(f"ds_swizzle_b32 v41, v{v} offset:0x401F")
            e("s_waitcnt lgkmcnt(0)")
            e(f"v_add_f32 v{v}, v{v}, v41")
        red(40)
        e("v_mul_f32 v40, 0x3b000000, v40")
        e("v_mov_b32 v42, 0")
        for j in range(16):
            e(f"v_sub_f32 v{24+j}, v{24+j}, v40")
            e(f"v_fmac_f32 v42, v{24+j}, v{24+j}")
        red(42)
        e("v_mul_f32 v42, 0x3b000000, v42")
        e(f"v_add_f32 v42, 0x{f2u(1e-5):08x}, v42")
        e("v_rsq_f32 v42, v42")
        e("s_nop 0")
        e("v_lshlrev_b32 v23, 9, v21")
        e("v_lshl_add_u32 v23, v20, 2, v23")
        for j in range(16):
            e(f"v_mul_f32 v{24+j}, v{24+j}, v42")
            round_bf16(24+j, 56)
            e(f"ds_write_b32 v23, v{24+j} offset:{LDS_T + 32*j}")
        e("s_waitcnt lgkmcnt(0)")
        e("s_barrier")
    return f

def loader_comb():
    def f():
        e("v_lshrrev_b32 v20, 3, v0")
        e("v_and_b32 v21, 7, v0")
        e("v_lshrrev_b32 v22, 2, v20")
        e("v_and_b32 v23, 3, v20")
        e("s_lshr_b32 s43, s2, 3")
        e("s_lshl_b32 s43, s43, 2")
        e("v_add_u32 v24, s43, v23")
        e("v_lshl_add_u32 v24, v22, 5, v24")
        e(f"s_mov_b32 s44, {528*SPLIT}")
        e("v_mul_lo_u32 v24, v24, s44")
        e(f"v_add_u32 v24, {WS_PART}, v24")
        e("v_lshl_add_u32 v25, v21, 6, v24")
        for s in range(SPLIT):
            e(f"global_load_dwordx2 v[{26+2*s}:{27+2*s}], v24, s[28:29] offset:{528*s}")
        for s in range(SPLIT):
            for j in range(4):
                e(f"global_load_dwordx4 v[{192+16*s+4*j}:{195+16*s+4*j}], v25, s[28:29] offset:{528*s+16+16*j}")
        e("s_waitcnt vmcnt(0)")
        e("v_max_f32 v34, v26, v28")
        e("v_max3_f32 v34, v34, v30, v32")
        e("v_mov_b32 v35, 0")
        for s in range(SPLIT):
            e(f"v_sub_f32 v{36+s}, v{26+2*s}, v34")
            e(f"v_exp_f32 v{36+s}, v{36+s}")
            e("s_nop 0")
            e(f"v_fmac_f32 v35, v{36+s}, v{27+2*s}")
        e("v_rcp_f32 v35, v35")
        e("s_nop 0")
        e("v_lshlrev_b32 v40, 12, v23")
        e("v_lshl_add_u32 v40, v21, 9, v40")
        e("v_lshl_add_u32 v40, v22, 2, v40")
        for j in range(16):
            e(f"v_mul_f32 v41, v36, v{192+j}")
            for s in range(1, SPLIT):
                e(f"v_fmac_f32 v41, v{36+s}, v{192+16*s+j}")
            e("v_mul_f32 v41, v41, v35")
            round_bf16(41, 42)
            e(f"ds_write_b32 v40, v41 offset:{LDS_T + 32*j}")
        e("s_waitcnt lgkmcnt(0)")
        e("s_barrier")
    return f

def loader_h():
    def f():
        e("s_lshr_b32 s43, s2, 3")
        e("s_mul_i32 s43, s43, 344")
        for half in range(2):
            e(f"v_add_u32 v20, {256*half}, v0")
            e("v_cmp_gt_u32 vcc, 344, v20")
            e("v_min_u32 v21, 343, v20")
            e("v_add_u32 v21, s43, v21")
            e("v_lshlrev_b32 v21, 2, v21")
            e(f"v_add_u32 v21, {WS_H}, v21")
            for b in range(8):
                e(f"v_add_u32 v22, {b*1376*4}, v21")
                e(f"global_load_dword v{24+b}, v22, s[28:29]")
            e("s_waitcnt vmcnt(0)")
            for b in range(8):
                e(f"v_cndmask_b32 v{24+b}, 0, v{24+b}, vcc")
            e("v_lshlrev_b32 v22, 5, v20")
            e("v_cmp_gt_u32 vcc, 352, v20")
            e("s_and_saveexec_b64 s[44:45], vcc")
            e(f"ds_write_b128 v22, v[24:27] offset:{LDS_T}")
            e(f"ds_write_b128 v22, v[28:31] offset:{LDS_T+16}")
            e("s_mov_b64 exec, s[44:45]")
        e("s_waitcnt lgkmcnt(0)")
        e("s_barrier")
    return f

def gen_all():
    gen_attn()
    def row_q():
        e("s_mov_b32 s40, 0")
        e("s_lshl_b32 s41, s2, 7")
    def epi_q():
        e("v_cvt_pk_bf16_f32 v10, v10, v10")
        e("v_lshlrev_b32 v11, 13, v7")
        e("v_lshl_add_u32 v11, v6, 1, v11")
        e("v_add_u32 v11, s41, v11")
        e(f"global_store_short v11, v10, s[28:29] offset:{WS_Q}")
    gen_gemv("q1_kernel", 64, 14, 8192, 64, 16, row_q, loader_ln("bf16", 0, 0, 0, WS_XB), epi_q)
    gen_gemv("q2_kernel", 64, 14, 8192, 64, 16, row_q, loader_ln("f32", 4, WS_PZ, WS_XA, WS_XB), epi_q)
    def row_o():
        e("s_lshr_b32 s40, s2, 3")
        e("s_lshl_b32 s40, s40, 9")
        e("s_and_b32 s41, s2, 7")
        e("s_lshl_b32 s41, s41, 7")
    def epi_part(off):
        def f():
            e("s_lshr_b32 s45, s2, 3")
            e("s_lshl_b32 s45, s45, 14")
            e("s_lshl_b32 s46, s41, 1")
            e("s_add_u32 s45, s45, s46")
            e("v_lshlrev_b32 v11, 11, v7")
            e("v_lshl_add_u32 v11, v6, 2, v11")
            e("v_add_u32 v11, s45, v11")
            e(f"v_add_u32 v11, {off}, v11")
            e("global_store_dword v11, v10, s[28:29]")
        return f
    gen_gemv("o_kernel", 64, 16, 1024, 64, 16, row_o, loader_comb(), epi_part(WS_PY))
    def row_f1():
        e("s_mov_b32 s40, 0")
        e("s_lshl_b32 s41, s2, 6")
    def epi_f1():
        round_bf16(10, 11)
        e("v_mul_f32 v11, 0xbfb8aa3b, v10")
        e("v_exp_f32 v11, v11")
        e("s_nop 0")
        e("v_add_f32 v11, 1.0, v11")
        e("v_rcp_f32 v11, v11")
        e("s_nop 0")
        e("v_mul_f32 v10, v10, v11")
        round_bf16(10, 11)
        e(f"s_mov_b32 s45, {1376*4}")
        e("v_mul_lo_u32 v11, v7, s45")
        e("v_lshl_add_u32 v11, v6, 2, v11")
        e("s_lshl_b32 s46, s41, 1")
        e("v_add_u32 v11, s46, v11")
        e(f"v_add_u32 v11, {WS_H}, v11")
        e("global_store_dword v11, v10, s[28:29]")
    gen_gemv("f1_kernel", 43, 20, 2752, 32, 8, row_f1, loader_ln("f32", 8, WS_PY, WS_XB, WS_XA), epi_f1)
    def row_f2():
        e("s_lshr_b32 s40, s2, 3")
        e("s_mul_i32 s40, s40, 344")
        e("s_and_b32 s41, s2, 7")
        e("s_lshl_b32 s41, s41, 7")
    gen_gemv("f2_kernel", 32, 22, 1024, 64, 11, row_f2, loader_h(), epi_part(WS_PZ), kvalid=344)
    name = "out_kernel"
    begin(name)
    e("s_cmp_ge_u32 s2, 16")
    e("s_cbranch_scc1 out_done")
    load_ptrs()
    e("s_lshl_b32 s3, s2, 8")
    e("v_add_u32 v1, s3, v0")
    e("v_lshlrev_b32 v2, 2, v1")
    e("s_waitcnt lgkmcnt(0)")
    e(f"v_add_u32 v3, {WS_XA}, v2")
    e("global_load_dword v4, v3, s[28:29]")
    for p in range(4):
        e(f"v_add_u32 v3, {WS_PZ + p*16384}, v2")
        e(f"global_load_dword v{5+p}, v3, s[28:29]")
    e("s_waitcnt vmcnt(0)")
    e("v_add_f32 v5, v5, v6")
    e("v_add_f32 v7, v7, v8")
    e("v_add_f32 v5, v5, v7")
    round_bf16(5, 6)
    e("v_add_f32 v4, v4, v5")
    e("v_cvt_pk_bf16_f32 v4, v4, v4")
    e("v_lshlrev_b32 v2, 1, v1")
    e("global_store_short v2, v4, s[24:25]")
    e("out_done:")
    end(name, 16)

gen_all()
launches = [
    ("q1_kernel", 64, 98304), ("attn_kernel", 1024, 8448), ("o_kernel", 64, 98304), ("f1_kernel", 43, 98304), ("f2_kernel", 32, 98304),
    ("q2_kernel", 64, 98304), ("attn_kernel", 1024, 8448), ("o_kernel", 64, 98304), ("f1_kernel", 43, 98304), ("f2_kernel", 32, 98304),
    ("out_kernel", 16, 0),
]
txt = HDR
for k, g, l in launches:
    txt += f"; @launch kernel={k} grid=({g},1,1) block=(256,1,1) lds={l}\n"
txt += '.amdgcn_target "amdgcn-amd-amdhsa--gfx950"\n.text\n'
txt += "\n".join(out) + "\n"
txt += '.section .rodata,"a"\n'
for k, v, s in kernels:
    txt += f""".p2align 6
.amdhsa_kernel {k}
  .amdhsa_next_free_vgpr {256 if v > 128 else v}
  .amdhsa_next_free_sgpr {s}
  .amdhsa_accum_offset {256 if v > 128 else v}
  .amdhsa_group_segment_fixed_size 0
  .amdhsa_kernarg_size 88
  .amdhsa_user_sgpr_count 2
  .amdhsa_user_sgpr_kernarg_segment_ptr 1
  .amdhsa_system_sgpr_workgroup_id_x 1
.end_amdhsa_kernel
"""
dst = sys.argv[1] if len(sys.argv) > 1 else f"cdna_kernels/{NAME}.s"
open(dst, "w").write(txt)
print("wrote", dst, len(txt))
```

```python
import re, struct

def f2u(f):
    return struct.unpack("<I", struct.pack("<f", f))[0]

TRANS = ("v_exp_f32", "v_log_f32", "v_rcp_f32", "v_rsq_f32", "v_sqrt_f32", "v_sin_f32", "v_cos_f32")

def _regs(tok):
    tok = tok.strip().lstrip("-")
    m = re.fullmatch(r"abs\((.*)\)", tok)
    if m: tok = m.group(1)
    m = re.fullmatch(r"([vs])(\d+)", tok)
    if m: return {(m.group(1), int(m.group(2)))}
    m = re.fullmatch(r"([vs])\[(\d+):(\d+)\]", tok)
    if m: return {(m.group(1), i) for i in range(int(m.group(2)), int(m.group(3)) + 1)}
    if tok == "vcc": return {("s", 106), ("s", 107)}
    if tok == "exec": return {("s", 126), ("s", 127)}
    if tok == "m0": return {("s", 124)}
    return set()

class Asm:
    def __init__(self):
        self.out = []
        self.hist = []
    def raw(self, s):
        self.out.append(s)
    def label(self, name):
        self.out.append(f"{name}:")
        self.out.append("s_nop 4")
        self.hist = []
    def _advance(self, n):
        self.hist = [(k, d, c + n) for (k, d, c) in self.hist if c + n < 8]
    def __call__(self, s):
        s = s.strip()
        op = s.split()[0]
        rest = s[len(op):]
        ops = [t.strip() for t in rest.split(",")]
        if ops:
            last = ops[-1].split()
            if last:
                ops[-1] = last[0]
        is_valu = op.startswith("v_")
        is_vmem = op.startswith(("global_", "buffer_"))
        is_ds = op.startswith("ds_")
        dst, src = set(), set()
        if is_valu:
            if op.startswith("v_cmp"):
                dst = _regs(ops[0]);
                for o in ops[1:]: src |= _regs(o)
            elif op.startswith("v_permlane") :
                dst = _regs(ops[0]) | _regs(ops[1]); src = set(dst)
            else:
                dst = _regs(ops[0])
                for o in ops[1:]: src |= _regs(o)
                if op.startswith(("v_fmac", "v_dot2c")): src |= dst
                if op.startswith("v_cndmask") and len(ops) == 3: src |= _regs("vcc")
        else:
            for o in ops: src |= _regs(o)
        need = 0
        is_dpp = "_dpp" in op
        for (k, d, c) in self.hist:
            req = 0
            ov = d & src
            ovv = {r for r in ov if r[0] == "v"}
            ovs = {r for r in ov if r[0] == "s"}
            if k.startswith("valu"):
                if ovv and is_dpp: req = max(req, 2)
                if ovv and op.startswith("v_permlane"): req = max(req, 2)
                if ovv and op.startswith(("v_readlane", "v_readfirstlane")): req = max(req, 1)
                if ovs and is_valu: req = max(req, 2)
                if ovs and op.startswith(("v_readlane", "v_writelane")): req = max(req, 4)
                if ovs and is_vmem: req = max(req, 5)
                if ovs and op.startswith("s_"): req = max(req, 1)
                if k == "valu_trans" and ovv and is_valu: req = max(req, 1)
                if k == "valu_dot" and (ovv or (d & dst)) and is_valu and not op.startswith("v_dot2_f32"): req = max(req, 3)
                if k == "valu_dot" and ovv and op.startswith("v_dot2_f32"):
                    ab = _regs(ops[1]) | _regs(ops[2])
                    if d & ab: req = max(req, 3)
                if k == "valu_dot" and ovv and (is_vmem or is_ds): req = max(req, 3)
                if ("s", 126) in d and is_valu: req = max(req, 5)
            if k == "m0" and is_vmem and " lds" in s: req = max(req, 1)
            if k == "store" and is_valu and (d & dst): req = max(req, 2)
            if k == "sexec" and (is_dpp or op.startswith("v_readlane") or op.startswith("v_permlane")): req = max(req, 1)
            need = max(need, req - c)
        if need > 0:
            self.out.append(f"s_nop {need-1}")
            self._advance(need)
        self.out.append(s)
        n = 1
        if op == "s_nop": n = int(ops[0]) + 1
        self._advance(n)
        if is_valu:
            k = "valu"
            if op.startswith(TRANS): k = "valu_trans"
            if op.startswith("v_dot2"): k = "valu_dot"
            self.hist.append((k, dst, 0))
        elif op.startswith("s_mov_b32") and ops[0] == "m0":
            self.hist.append(("m0", set(), 0))
        elif is_vmem and "store" in op:
            dd = set()
            for o in ops: dd |= {r for r in _regs(o) if r[0] == "v"}
            self.hist.append(("store", dd, 0))
        elif op.startswith("s_") and ("exec" in s):
            self.hist.append(("sexec", set(), 0))
    def text(self):
        return "\n".join(self.out) + "\n"
```

```python
import sys
from asmlib import Asm, f2u
NAME = "interleave_layers__gqa_block_cached__dense_activation_silu__decode"
HDR = open(f"cdna_kernels/{NAME}.s.ref").read().split("; Override launch geometry")[0]
e = Asm()

WS_P = 0
WS_Y = 0x1D0000
WS_Z = 0x2D0000
WS_Q = 0x3D0000
C_SCALE = 1.4426950408889634 / (128 ** 0.5)
SPIN_LIMIT = 1 << 21

NSW = 224
NL = 21
NSLOT = 72
SL_Q = 7 * NL * 1024
SL_PB = SL_Q + 4096
SL_FLAG = SL_PB + 2 * 7 * 528
LDS_BYTES = SL_FLAG + 32

_lab = [0]
def newlab(p="L"):
    _lab[0] += 1
    return f".{p}{_lab[0]}"

def spin_tail(loop):
    e("s_sleep 1")
    e("s_add_u32 s47, s47, 1")
    e(f"s_cmp_lt_u32 s47, {SPIN_LIMIT}")
    e(f"s_cbranch_scc1 {loop}")
    e("s_endpgm")

def round_bf16(v, tmp):
    e(f"v_cvt_pk_bf16_f32 v{tmp}, v{v}, v{v}")
    e(f"v_lshlrev_b32 v{v}, 16, v{tmp}")

def xor_reduce(vals, tmps, op, which):
    ins = {16: "v_permlane16_swap_b32", 32: "v_permlane32_swap_b32"}[which]
    for v, t in zip(vals, tmps):
        e(f"v_mov_b32 v{t}, v{v}")
    for v, t in zip(vals, tmps):
        e(f"{ins} v{v}, v{t}")
    for v, t in zip(vals, tmps):
        e(f"{op} v{v}, v{v}, v{t}")

def row_reduce(vals, op, rors=(8, 4, 2, 1)):
    for r in rors:
        for v in vals:
            e(f"{op}_dpp v{v}, v{v}, v{v} row_ror:{r} row_mask:0xf bank_mask:0xf")

def wait_cleared(vtmp, vaddr):
    lp = newlab(); dn = newlab()
    e(f"v_mov_b32 v{vaddr}, 0")
    e.label(lp)
    e(f"global_load_dword v{vtmp}, v{vaddr}, s[26:27] sc1")
    e("s_waitcnt vmcnt(0)")
    e(f"v_readfirstlane_b32 s50, v{vtmp}")
    e("s_cmp_ge_u32 s50, 256")
    e(f"s_cbranch_scc1 {dn}")
    spin_tail(lp)
    e.label(dn)

def clear_share(nst, first, total_per_lane_stride):
    pass

e.raw(f".globl {NAME}_kernel")
e.raw(".p2align 8")
e.raw(f".type {NAME}_kernel,@function")
e.raw(f"{NAME}_kernel:")
e("s_cmp_ge_u32 s2, 256")
e("s_cbranch_scc1 L_exit")
e("s_load_dwordx16 s[8:23], s[0:1], 0")
e("s_load_dwordx4 s[24:27], s[0:1], 64")
e("s_load_dwordx2 s[28:29], s[0:1], 80")
e("v_and_b32 v1, 63, v0")
e("v_lshrrev_b32 v2, 6, v0")
e("v_readfirstlane_b32 s30, v2")
e("s_mov_b32 s47, 0")
e(f"s_mov_b32 s44, 0x{f2u(C_SCALE):08x}")
e("s_waitcnt lgkmcnt(0)")
e(f"s_cmp_ge_u32 s2, {NSW}")
e("s_cbranch_scc1 L_chain")
e("s_mov_b32 s3, 0x24924925")
e("s_mul_hi_u32 s31, s2, s3")
e("s_mul_i32 s3, s31, 7")
e("s_sub_u32 s32, s2, s3")
e("s_cmp_eq_u32 s30, 7")
e("s_cbranch_scc1 L_control")

e("s_mul_i32 s33, s32, 7")
e("s_add_u32 s33, s33, s30")
e("s_mul_i32 s3, s33, 21504")
e("v_lshlrev_b32 v2, 4, v1")
e("v_add_u32 v2, s3, v2")
e("s_mul_i32 s48, s30, 21504")
e("v_lshlrev_b32 v3, 4, v1")
e("v_add_u32 v3, s48, v3")
e("s_lshl_b32 s3, s31, 20")
e("s_add_u32 s36, s10, s3")
e("s_addc_u32 s37, s11, 0")
e("s_and_b32 s37, s37, 0xffff")
e("s_mov_b32 s38, 0x100000")
e("s_mov_b32 s39, 0x00020000")
e("s_add_u32 s40, s12, s3")
e("s_addc_u32 s41, s13, 0")
e("s_and_b32 s41, s41, 0xffff")
e("s_mov_b32 s42, 0x100000")
e("s_mov_b32 s43, 0x00020000")
e("s_cmp_eq_u32 s33, 48")
e("s_cselect_b32 s45, 0xf149f2ca, 0")
e("v_and_b32 v49, 15, v1")
e("v_lshlrev_b32 v49, 4, v49")
e(f"v_add_u32 v49, {SL_Q}, v49")
e(f"v_mov_b32 v50, {SL_FLAG}")
e("s_mul_i32 s3, s30, 528")
e(f"s_add_u32 s3, s3, {SL_PB}")
e("v_lshlrev_b32 v48, 5, v1")
e("v_add_u32 v48, s3, v48")
e("v_mov_b32 v51, 1")

lset = {2, 5, 9, 12, 16, 19, 23}
slot_type = []
nv = nl = 0
for s in range(NSLOT):
    if s % 24 in lset:
        slot_type.append(("L", nl)); nl += 1
    else:
        slot_type.append(("V", 52 + 4 * nv)); nv += 1
assert nl == NL and 52 + 4 * nv == 256, (nl, nv)

vm = []
srd_batch = {"K": 0, "V": 0}
waited = [-1]
def issue(n):
    b, r = divmod(n, 42)
    grp, k = divmod(r, 6)
    kind = "K" if k < 3 else "V"
    quad = grp * 3 + (k % 3)
    base = 36 if kind == "K" else 40
    while srd_batch[kind] < b:
        e(f"s_add_u32 s{base}, s{base}, 0x2000000")
        e(f"s_addc_u32 s{base+1}, s{base+1}, 0")
        srd_batch[kind] += 1
    assert srd_batch[kind] == b
    t, loc = slot_type[n % NSLOT]
    e(f"s_mov_b32 s46, {quad*1024}")
    if t == "V":
        e(f"buffer_load_dwordx4 v[{loc}:{loc+3}], v2, s[{base}:{base+3}], s46 offen nt")
    else:
        e(f"s_add_u32 s49, s48, {loc*1024}")
        e("s_mov_b32 m0, s49")
        e(f"buffer_load_dwordx4 v2, s[{base}:{base+3}], s46 offen nt lds")
    vm.append(n)
def wait_unit(n):
    idx = vm.index(n)
    if idx <= waited[0]:
        return
    N = len(vm) - 1 - idx
    if N <= 63:
        e(f"s_waitcnt vmcnt({N})")
    waited[0] = idx

def wait_flag(off, need):
    lp = newlab(); dn = newlab()
    e.label(lp)
    e(f"ds_read_b32 v21, v50 offset:{off}")
    e("s_waitcnt lgkmcnt(0)")
    e("v_readfirstlane_b32 s50, v21")
    e(f"s_cmp_ge_u32 s50, {need}")
    e(f"s_cbranch_scc1 {dn}")
    spin_tail(lp)
    e.label(dn)

def pass_code(b, pas):
    wait_flag(4 * pas, b + 1)
    e(f"ds_read_b128 v[4:7], v49 offset:{(pas*8+b)*256}")
    e("v_mov_b32 v8, 0xff800000")
    for r in range(9, 18):
        e(f"v_mov_b32 v{r}, 0")
    for grp in range(7):
        n0 = b * 42 + grp * 6
        wait_unit(n0 + 2)
        ksrc = []; anyl = False
        for i in range(3):
            t, loc = slot_type[(n0 + i) % NSLOT]
            if t == "V": ksrc.append(loc)
            else:
                e(f"ds_read_b128 v[{24+4*i}:{27+4*i}], v3 offset:{loc*1024}")
                ksrc.append(24 + 4 * i); anyl = True
        if anyl or grp == 0:
            e("s_waitcnt lgkmcnt(0)")
        for j in range(4):
            for i in range(3):
                if j == 0: e(f"v_dot2_f32_bf16 v{18+i}, v{ksrc[i]}, v4, 0")
                else: e(f"v_dot2_f32_bf16 v{18+i}, v{ksrc[i]+j}, v{4+j}, v{18+i}")
        wait_unit(n0 + 5)
        vsrc = []; anyl = False
        for i in range(3):
            t, loc = slot_type[(n0 + 3 + i) % NSLOT]
            if t == "V": vsrc.append(loc)
            else:
                e(f"ds_read_b128 v[{36+4*i}:{39+4*i}], v3 offset:{loc*1024}")
                vsrc.append(36 + 4 * i); anyl = True
        row_reduce([18, 19, 20], "v_add_f32")
        for i in range(3):
            if grp * 3 + i >= 16:
                e(f"v_add_f32 v{18+i}, s45, v{18+i}")
        e("v_max3_f32 v21, v18, v19, v20")
        e("v_max_f32 v21, v21, v8")
        e("v_sub_f32 v22, v8, v21")
        e("v_mul_f32 v22, s44, v22")
        e("v_exp_f32 v22, v22")
        e("v_mul_f32 v23, s44, v21")
        e("v_mov_b32 v8, v21")
        for i in range(3):
            e(f"v_fma_f32 v{18+i}, v{18+i}, s44, -v23")
        for i in range(3):
            e(f"v_exp_f32 v{18+i}, v{18+i}")
        for r in range(9, 18):
            e(f"v_mul_f32 v{r}, v{r}, v22")
        for i in range(3):
            e(f"v_add_f32 v9, v9, v{18+i}")
        if anyl:
            e("s_waitcnt lgkmcnt(0)")
        for i in range(3):
            for j in range(4):
                e(f"v_lshlrev_b32 v21, 16, v{vsrc[i]+j}")
                e(f"v_and_b32 v22, 0xffff0000, v{vsrc[i]+j}")
                e(f"v_fmac_f32 v{10+2*j}, v{18+i}, v21")
                e(f"v_fmac_f32 v{11+2*j}, v{18+i}, v22")
        if pas == 1:
            for k in range(6):
                if n0 + k + NSLOT < 336:
                    issue(n0 + k + NSLOT)
    e("v_mul_f32 v8, s44, v8")
    e("v_mov_b32 v18, v8")
    xor_reduce([18], [19], "v_max_f32", 16)
    xor_reduce([18], [19], "v_max_f32", 32)
    e("v_sub_f32 v19, v8, v18")
    e("v_exp_f32 v19, v19")
    for r in range(9, 18):
        e(f"v_mul_f32 v{r}, v{r}, v19")
    vals = list(range(9, 18)); tm = list(range(24, 33))
    xor_reduce(vals, tm, "v_add_f32", 16)
    xor_reduce(vals, tm, "v_add_f32", 32)
    e("v_mov_b32 v8, v18")
    e("s_mov_b64 exec, 0xffff")
    e(f"ds_write_b128 v48, v[10:13] offset:{pas*3696}")
    e(f"ds_write_b128 v48, v[14:17] offset:{pas*3696+16}")
    e("s_mov_b64 exec, 1")
    e(f"ds_write_b64 v48, v[8:9] offset:{pas*3696+512}")
    e("s_waitcnt lgkmcnt(0)")
    e(f"ds_add_u32 v50, v51 offset:{8+4*pas}")
    e("s_mov_b64 exec, -1")

for n in range(NSLOT):
    issue(n)
e("s_barrier")
for b in range(8):
    pass_code(b, 0)
    pass_code(b, 1)
e("s_endpgm")

e.label("L_control")
e(f"v_mov_b32 v50, {SL_FLAG}")
e("v_mov_b32 v4, 0")
e("v_mov_b32 v5, 0")
e("v_mov_b32 v6, 0")
e("v_mov_b32 v7, 0")
e("ds_write_b128 v50, v[4:7]")
e("s_waitcnt lgkmcnt(0)")
e("s_barrier")
def do_clear():
    for r in range(4, 8):
        e(f"v_mov_b32 v{r}, -1")
    e("s_lshl_b32 s3, s2, 14")
    e("v_lshlrev_b32 v8, 4, v1")
    e("v_add_u32 v8, s3, v8")
    for i in range(16):
        if i % 4 == 0 and i:
            e("v_add_u32 v8, 4096, v8")
        e(f"global_store_dwordx4 v8, v[4:7], s[28:29] offset:{(i%4)*1024} sc1")
    e("s_waitcnt vmcnt(0)")
    e("v_mov_b32 v8, 0")
    e("v_mov_b32 v9, 1")
    e("s_mov_b64 exec, 1")
    e("global_atomic_add v8, v9, s[26:27] sc1")
    e("s_mov_b64 exec, -1")
do_clear()
wait_cleared(10, 11)
def fetch_q(pas, bsgpr_or_const, flagoff):
    lp = newlab(); dn = newlab()
    e(f"s_add_u32 s52, s51, {pas*8}")
    e("s_lshl_b32 s53, s52, 5")
    e("s_add_u32 s53, s53, s31")
    e("s_lshl_b32 s53, s53, 8")
    e(f"s_add_u32 s53, s53, {WS_Q}")
    e("v_lshlrev_b32 v10, 2, v1")
    e("v_add_u32 v10, s53, v10")
    e.label(lp)
    e("global_load_dword v11, v10, s[28:29] sc1")
    e("s_waitcnt vmcnt(0)")
    e("v_cmp_eq_u32 vcc, -1, v11")
    e("s_cmp_eq_u64 vcc, 0")
    e(f"s_cbranch_scc1 {dn}")
    spin_tail(lp)
    e.label(dn)
    e("s_lshl_b32 s53, s52, 8")
    e(f"s_add_u32 s53, s53, {SL_Q}")
    e("v_lshlrev_b32 v10, 2, v1")
    e("v_add_u32 v10, s53, v10")
    e("ds_write_b32 v10, v11")
    e("s_add_u32 s53, s51, 1")
    e("v_mov_b32 v12, s53")
    e("s_waitcnt lgkmcnt(0)")
    e(f"ds_write_b32 v50, v12 offset:{flagoff}")
def publish(pas):
    lp = newlab(); dn = newlab()
    e("s_add_u32 s53, s51, 1")
    e("s_mul_i32 s53, s53, 7")
    e.label(lp)
    e(f"ds_read_b32 v10, v50 offset:{8+4*pas}")
    e("s_waitcnt lgkmcnt(0)")
    e("v_readfirstlane_b32 s50, v10")
    e("s_cmp_ge_u32 s50, s53")
    e(f"s_cbranch_scc1 {dn}")
    spin_tail(lp)
    e.label(dn)
    e("v_lshlrev_b32 v10, 3, v1")
    e(f"v_add_u32 v10, {SL_PB + pas*3696}, v10")
    e(f"v_mov_b32 v11, {SL_PB + pas*3696 + 512}")
    for i in range(7):
        e(f"ds_read_b64 v[{12+2*i}:{13+2*i}], v10 offset:{528*i}")
        e(f"ds_read_b64 v[{26+2*i}:{27+2*i}], v11 offset:{528*i}")
    e("s_waitcnt lgkmcnt(0)")
    e("v_max3_f32 v40, v26, v28, v30")
    e("v_max3_f32 v40, v40, v32, v34")
    e("v_max3_f32 v40, v40, v36, v38")
    e("v_mov_b32 v41, 0")
    e("v_mov_b32 v42, 0")
    e("v_mov_b32 v43, 0")
    for i in range(7):
        e(f"v_sub_f32 v44, v{26+2*i}, v40")
        e("v_exp_f32 v44, v44")
        e(f"v_fmac_f32 v41, v44, v{27+2*i}")
        e(f"v_fmac_f32 v42, v44, v{12+2*i}")
        e(f"v_fmac_f32 v43, v44, v{13+2*i}")
    for r in range(40, 44):
        e(f"v_min_u32 v{r}, 0xfffffffe, v{r}")
    e(f"s_add_u32 s52, s51, {pas*8}")
    e("s_lshl_b32 s52, s52, 5")
    e("s_add_u32 s52, s52, s31")
    e("s_mul_i32 s52, s52, 7")
    e("s_add_u32 s52, s52, s32")
    e("s_mul_i32 s52, s52, 528")
    e("v_lshlrev_b32 v10, 3, v1")
    e("v_add_u32 v10, s52, v10")
    e(f"global_store_dwordx2 v10, v[42:43], s[28:29] offset:{WS_P} sc1")
    e("s_mov_b64 exec, 1")
    e(f"global_store_dwordx2 v10, v[40:41], s[28:29] offset:{WS_P+512} sc1")
    e("s_mov_b64 exec, -1")
e("s_mov_b32 s51, 0")
e.label("L_ctl_q1")
fetch_q(0, None, 0)
e("s_add_u32 s51, s51, 1")
e("s_cmp_lt_u32 s51, 8")
e("s_cbranch_scc1 L_ctl_q1")
e("s_mov_b32 s51, 0")
e.label("L_ctl_loop")
publish(0)
fetch_q(1, None, 4)
publish(1)
e("s_add_u32 s51, s51, 1")
e("s_cmp_lt_u32 s51, 8")
e("s_cbranch_scc1 L_ctl_loop")
e("s_endpgm")

CX, CG, CN, CR, CH = 0, 16384, 24576, 25600, 41984
WO, W1, W2, WQ = 64, 128, 160, 184
e.label("L_chain")
e(f"s_sub_u32 s31, s2, {NSW}")
e("v_and_b32 v2, 15, v0")
e("v_lshrrev_b32 v3, 4, v0")
e("v_lshlrev_b32 v3, 17, v3")
e("v_lshl_add_u32 v3, v2, 4, v3")
e("s_lshl_b32 s3, s31, 8")
e("v_add_u32 v3, s3, v3")
for k in range(16):
    e(f"v_add_u32 v4, {k*8192}, v3")
    e(f"global_load_dwordx4 v[{WQ+4*k}:{WQ+4*k+3}], v4, s[14:15]")
e("v_lshlrev_b32 v4, 4, v0")
e("global_load_dwordx4 v[8:11], v4, s[8:9]")
e("s_lshl_b32 s3, s31, 7")
e("s_lshl_b32 s4, s30, 4")
e("s_add_u32 s3, s3, s4")
e("s_lshl_b32 s3, s3, 10")
e("v_lshlrev_b32 v3, 4, v1")
e("v_add_u32 v3, s3, v3")
for k in range(16):
    e(f"v_add_u32 v4, {k*1024}, v3")
    e(f"global_load_dwordx4 v[{WO+4*k}:{WO+4*k+3}], v4, s[16:17]")
e("s_mul_i32 s4, s31, 6")
e("s_mul_i32 s5, s31, 5")
e("s_add_u32 s5, s5, 12")
e("s_cmp_lt_u32 s31, 12")
e("s_cselect_b32 s34, s4, s5")
e("s_cselect_b32 s35, 6, 5")
e("v_and_b32 v2, 7, v0")
e("v_lshrrev_b32 v3, 3, v0")
e("s_sub_u32 s4, s35, 1")
e("v_min_u32 v5, s4, v2")
e("v_add_u32 v5, s34, v5")
e("v_lshlrev_b32 v5, 4, v5")
e(f"s_mov_b32 s4, {8*2752}")
e("v_mul_lo_u32 v3, v3, s4")
e("v_add_u32 v3, v3, v5")
for k in range(8):
    e(f"v_add_u32 v4, {k*2752}, v3")
    e(f"global_load_dwordx4 v[{W1+4*k}:{W1+4*k+3}], v4, s[20:21]")
e("s_lshl_b32 s4, s34, 3")
e("s_mul_i32 s5, s30, 6")
e("s_add_u32 s4, s4, s5")
e("v_lshlrev_b32 v3, 4, v1")
for k in range(6):
    e(f"s_add_u32 s5, s4, {k}")
    e("s_min_u32 s5, s5, 1375")
    e("s_lshl_b32 s5, s5, 10")
    e("v_add_u32 v4, s5, v3")
    e(f"global_load_dwordx4 v[{W2+4*k}:{W2+4*k+3}], v4, s[22:23]")
e("s_cmp_lg_u32 s30, 7")
e("s_cbranch_scc1 L_ch_noclear")
e("s_waitcnt vmcnt(0)")
e("v_mov_b32 v12, v8")
e("v_mov_b32 v13, v9")
do_clear()
e("v_mov_b32 v8, v12")
e("v_mov_b32 v9, v13")
e.label("L_ch_noclear")
e("s_waitcnt vmcnt(0)")
for j in range(4):
    e(f"v_lshlrev_b32 v{12+2*j}, 16, v{8+j}")
    e(f"v_and_b32 v{13+2*j}, 0xffff0000, v{8+j}")
e("v_lshlrev_b32 v4, 5, v0")
e(f"ds_write_b128 v4, v[12:15] offset:{CX}")
e(f"ds_write_b128 v4, v[16:19] offset:{CX+16}")
e("v_cmp_gt_u32 vcc, s35, v2")
for r in range(W1, W1 + 32):
    e(f"v_cndmask_b32 v{r}, 0, v{r}, vcc")
e("s_lshl_b32 s4, s35, 3")
e("s_mul_i32 s5, s30, 6")
for k in range(6):
    e(f"s_add_u32 s6, s5, {k}")
    e("s_cmp_lt_u32 s6, s4")
    e("s_cselect_b32 s6, -1, 0")
    for r in range(4):
        e(f"v_and_b32 v{W2+4*k+r}, s6, v{W2+4*k+r}")
e("s_mov_b32 s4, 0x05040100")
e("s_mov_b32 s5, 0x07060302")
def permute(base, nrows):
    for p in range(nrows // 2):
        A = base + 8 * p; B = A + 4
        for i in range(4):
            e(f"v_perm_b32 v{20+2*i}, v{B+i}, v{A+i}, s4")
            e(f"v_perm_b32 v{21+2*i}, v{B+i}, v{A+i}, s5")
        for i in range(8):
            e(f"v_mov_b32 v{A+i}, v{20+i}")
permute(WQ, 16); permute(WO, 16); permute(W1, 8); permute(W2, 6)
e("s_waitcnt lgkmcnt(0)")
e("s_barrier")
wait_cleared(10, 11)

def ln_to_cn():
    e("v_add_f32 v16, v8, v9")
    for j in range(10, 16):
        e(f"v_add_f32 v16, v16, v{j}")
    row_reduce([16], "v_add_f32")
    xor_reduce([16], [17], "v_add_f32", 16)
    xor_reduce([16], [17], "v_add_f32", 32)
    e("v_mul_f32 v16, 0x3b000000, v16")
    e("v_mov_b32 v18, 0")
    for j in range(8):
        e(f"v_sub_f32 v{20+j}, v{8+j}, v16")
        e(f"v_fmac_f32 v18, v{20+j}, v{20+j}")
    row_reduce([18], "v_add_f32")
    xor_reduce([18], [17], "v_add_f32", 16)
    xor_reduce([18], [17], "v_add_f32", 32)
    e("v_mul_f32 v18, 0x3b000000, v18")
    e(f"v_add_f32 v18, 0x{f2u(1e-5):08x}, v18")
    e("v_rsq_f32 v18, v18")
    for j in range(8):
        e(f"v_mul_f32 v{20+j}, v{20+j}, v18")
    for j in range(4):
        e(f"v_cvt_pk_bf16_f32 v{28+j}, v{20+2*j}, v{21+2*j}")
    e("v_lshlrev_b32 v17, 4, v1")
    e(f"ds_write_b128 v17, v[28:31] offset:{CN}")
    e("s_waitcnt lgkmcnt(0)")

def q_tail(pas):
    ln_to_cn()
    e("v_lshrrev_b32 v17, 4, v0")
    e("v_lshlrev_b32 v17, 5, v17")
    e(f"ds_read_b128 v[20:23], v17 offset:{CN}")
    e(f"ds_read_b128 v[24:27], v17 offset:{CN+16}")
    e("s_waitcnt lgkmcnt(0)")
    for p in range(8):
        for c in range(8):
            if p == 0: e(f"v_dot2_f32_bf16 v{32+c}, v{WQ+c}, v20, 0")
            else: e(f"v_dot2_f32_bf16 v{32+c}, v{WQ+8*p+c}, v{20+p}, v{32+c}")
    vals = list(range(32, 40)); tm = list(range(40, 48))
    xor_reduce(vals, tm, "v_add_f32", 16)
    xor_reduce(vals, tm, "v_add_f32", 32)
    e("s_lshl_b32 s3, s30, 11")
    e("v_lshlrev_b32 v17, 5, v1")
    e("v_add_u32 v17, s3, v17")
    e("s_mov_b64 exec, 0xffff")
    e(f"ds_write_b128 v17, v[32:35] offset:{CR}")
    e(f"ds_write_b128 v17, v[36:39] offset:{CR+16}")
    e("s_mov_b64 exec, -1")
    e("s_waitcnt lgkmcnt(0)")
    e("s_barrier")
    sk = newlab()
    e("s_cmp_lg_u32 s30, 0")
    e(f"s_cbranch_scc1 {sk}")
    e("v_lshlrev_b32 v17, 3, v1")
    for w in range(8):
        e(f"ds_read_b64 v[{32+2*w}:{33+2*w}], v17 offset:{CR+2048*w}")
    e("s_waitcnt lgkmcnt(0)")
    for w in range(1, 8):
        e(f"v_add_f32 v32, v32, v{32+2*w}")
        e(f"v_add_f32 v33, v33, v{33+2*w}")
    e("v_cvt_pk_bf16_f32 v32, v32, v33")
    e("v_min_u32 v32, 0xfffffffe, v32")
    e(f"s_add_u32 s3, s51, {pas*8}")
    e("s_lshl_b32 s3, s3, 5")
    e("s_add_u32 s3, s3, s31")
    e("s_lshl_b32 s3, s3, 8")
    e(f"s_add_u32 s3, s3, {WS_Q}")
    e("v_lshlrev_b32 v17, 2, v1")
    e("v_add_u32 v17, s3, v17")
    e("global_store_dword v17, v32, s[28:29] sc1")
    e.label(sk)

def write_x():
    sk = newlab()
    e("s_cmp_lg_u32 s30, 0")
    e(f"s_cbranch_scc1 {sk}")
    e("s_lshl_b32 s3, s52, 11")
    e("v_lshlrev_b32 v17, 5, v1")
    e("v_add_u32 v17, s3, v17")
    e(f"ds_write_b128 v17, v[8:11] offset:{CX}")
    e(f"ds_write_b128 v17, v[12:15] offset:{CX+16}")
    e("s_waitcnt lgkmcnt(0)")
    e.label(sk)

def cr_publish(wsoff, pas):
    sk = newlab()
    e("s_cmp_ge_u32 s30, 2")
    e(f"s_cbranch_scc1 {sk}")
    e("v_lshlrev_b32 v17, 4, v0")
    for w in range(8):
        e(f"ds_read_b128 v[{32+4*w}:{35+4*w}], v17 offset:{CR+2048*w}")
    e("s_waitcnt lgkmcnt(0)")
    for w in range(1, 8):
        for c in range(4):
            e(f"v_add_f32 v{32+c}, v{32+c}, v{32+4*w+c}")
    for c in range(4):
        e(f"v_min_u32 v{32+c}, 0xfffffffe, v{32+c}")
    e(f"s_add_u32 s3, s52, {pas*8}")
    e("s_lshl_b32 s3, s3, 5")
    e("s_add_u32 s3, s3, s31")
    e("s_lshl_b32 s3, s3, 11")
    e(f"s_add_u32 s3, s3, {wsoff}")
    e("v_add_u32 v17, s3, v17")
    e("global_store_dwordx4 v17, v[32:35], s[28:29] sc1")
    e.label(sk)

def cr_write():
    e("s_lshl_b32 s3, s30, 11")
    e("v_lshlrev_b32 v17, 5, v1")
    e("v_add_u32 v17, s3, v17")
    e(f"ds_write_b128 v17, v[32:35] offset:{CR}")
    e(f"ds_write_b128 v17, v[36:39] offset:{CR+16}")
    e("s_waitcnt lgkmcnt(0)")
    e("s_barrier")

def stage0(pas):
    lp = newlab(); dn = newlab()
    e(f"s_add_u32 s3, s52, {pas*8}")
    e("s_lshl_b32 s3, s3, 5")
    e("s_add_u32 s3, s3, s31")
    e(f"s_mul_i32 s3, s3, {7*528}")
    e("v_and_b32 v2, 7, v1")
    e("v_min_u32 v3, 6, v2")
    e("v_mul_u32_u24 v3, 528, v3")
    e("v_add_u32 v3, s3, v3")
    e("v_lshrrev_b32 v4, 3, v1")
    e("s_lshl_b32 s3, s30, 6")
    e("v_lshl_add_u32 v4, v4, 3, v3")
    e("v_add_u32 v4, s3, v4")
    e.label(lp)
    e(f"global_load_dwordx2 v[8:9], v3, s[28:29] offset:{WS_P+512} sc1")
    e(f"global_load_dwordx2 v[10:11], v4, s[28:29] offset:{WS_P} sc1")
    e("s_waitcnt vmcnt(0)")
    e("v_max3_u32 v12, v8, v9, v10")
    e("v_max_u32 v12, v12, v11")
    e("v_cmp_eq_u32 vcc, -1, v12")
    e("s_cmp_eq_u64 vcc, 0")
    e(f"s_cbranch_scc1 {dn}")
    spin_tail(lp)
    e.label(dn)
    e("v_cmp_eq_u32 vcc, 7, v2")
    e("v_mov_b32 v12, 0xff800000")
    e("v_cndmask_b32 v8, v8, v12, vcc")
    e("v_mov_b32 v12, v8")
    def red8(vals, op):
        for ctl in ("quad_perm:[1,0,3,2]", "quad_perm:[2,3,0,1]", "row_half_mirror"):
            for v in vals:
                e(f"{op}_dpp v{v}, v{v}, v{v} {ctl} row_mask:0xf bank_mask:0xf")
    red8([12], "v_max_f32")
    e("v_sub_f32 v8, v8, v12")
    e("v_exp_f32 v8, v8")
    e("v_mul_f32 v9, v9, v8")
    e("v_mul_f32 v10, v10, v8")
    e("v_mul_f32 v11, v11, v8")
    red8([9, 10, 11], "v_add_f32")
    e("v_rcp_f32 v9, v9")
    e("v_mul_f32 v10, v10, v9")
    e("v_mul_f32 v11, v11, v9")
    e("v_cvt_pk_bf16_f32 v10, v10, v11")
    for p in range(8):
        e(f"v_readlane_b32 s{56+p}, v10, {8*p}")
    for p in range(8):
        for c in range(8):
            if p == 0: e(f"v_dot2_f32_bf16 v{32+c}, v{WO+c}, s56, 0")
            else: e(f"v_dot2_f32_bf16 v{32+c}, v{WO+8*p+c}, s{56+p}, v{32+c}")
    e("s_barrier")
    cr_write()
    cr_publish(WS_Y, pas)

def gather(wsoff, pas):
    lp = newlab(); dn = newlab()
    e(f"s_add_u32 s3, s52, {pas*8}")
    e("s_lshl_b32 s3, s3, 16")
    e(f"s_add_u32 s3, s3, {wsoff}")
    e("v_and_b32 v2, 127, v0")
    e("v_lshrrev_b32 v3, 7, v0")
    e("v_lshlrev_b32 v4, 14, v3")
    e("v_lshl_add_u32 v4, v2, 4, v4")
    e("v_add_u32 v4, s3, v4")
    e("v_add_u32 v4, 0x1000, v4")
    e("v_add_u32 v5, 0x2000, v4")
    e.label(lp)
    for jj in range(8):
        va = 4 if jj < 4 else 5
        e(f"global_load_dwordx4 v[{32+4*jj}:{35+4*jj}], v{va}, s[28:29] offset:{(jj%4)*2048-4096} sc1")
    e("s_waitcnt vmcnt(0)")
    e("v_max3_u32 v6, v32, v33, v34")
    for r in range(35, 63, 2):
        e(f"v_max3_u32 v6, v6, v{r}, v{r+1}")
    e("v_max_u32 v6, v6, v63")
    e("v_cmp_eq_u32 vcc, -1, v6")
    e("s_cmp_eq_u64 vcc, 0")
    e(f"s_cbranch_scc1 {dn}")
    spin_tail(lp)
    e.label(dn)
    for jj in range(1, 8):
        for c in range(4):
            e(f"v_add_f32 v{32+c}, v{32+c}, v{32+4*jj+c}")
    e("v_lshlrev_b32 v4, 4, v0")
    e("s_barrier")
    e(f"ds_write_b128 v4, v[32:35] offset:{CG}")
    e("s_waitcnt lgkmcnt(0)")
    e("s_barrier")
    e("v_lshlrev_b32 v4, 5, v1")
    for jg in range(4):
        e(f"ds_read_b128 v[{32+8*jg}:{35+8*jg}], v4 offset:{CG+2048*jg}")
        e(f"ds_read_b128 v[{36+8*jg}:{39+8*jg}], v4 offset:{CG+2048*jg+16}")
    e("s_lshl_b32 s3, s52, 11")
    e("v_add_u32 v4, s3, v4")
    e(f"ds_read_b128 v[8:11], v4 offset:{CX}")
    e(f"ds_read_b128 v[12:15], v4 offset:{CX+16}")
    e("s_waitcnt lgkmcnt(0)")
    for c in range(8):
        e(f"v_add_f32 v{32+c}, v{32+c}, v{40+c}")
        e(f"v_add_f32 v{48+c}, v{48+c}, v{56+c}")
        e(f"v_add_f32 v{32+c}, v{32+c}, v{48+c}")
        round_bf16(32 + c, 16)
        e(f"v_add_f32 v{8+c}, v{8+c}, v{32+c}")
        round_bf16(8 + c, 16)

def stage1(pas):
    gather(WS_Y, pas)
    ln_to_cn()
    e("v_lshrrev_b32 v17, 3, v0")
    e("v_lshlrev_b32 v17, 4, v17")
    e(f"ds_read_b128 v[20:23], v17 offset:{CN}")
    e("s_waitcnt lgkmcnt(0)")
    for p in range(4):
        for c in range(8):
            if p == 0: e(f"v_dot2_f32_bf16 v{32+c}, v{W1+c}, v20, 0")
            else: e(f"v_dot2_f32_bf16 v{32+c}, v{W1+8*p+c}, v{20+p}, v{32+c}")
    vals = list(range(32, 40)); tm = list(range(40, 48))
    row_reduce(vals, "v_add_f32", rors=(8,))
    xor_reduce(vals, tm, "v_add_f32", 16)
    xor_reduce(vals, tm, "v_add_f32", 32)
    e("s_lshl_b32 s3, s30, 8")
    e("v_lshlrev_b32 v17, 5, v1")
    e("v_add_u32 v17, s3, v17")
    e("s_mov_b64 exec, 0xff")
    e(f"ds_write_b128 v17, v[32:35] offset:{CH}")
    e(f"ds_write_b128 v17, v[36:39] offset:{CH+16}")
    e("s_mov_b64 exec, -1")
    e("s_waitcnt lgkmcnt(0)")
    e("s_barrier")
    write_x()
    e("v_lshlrev_b32 v17, 2, v1")
    for w in range(8):
        e(f"ds_read_b32 v{32+w}, v17 offset:{CH+256*w}")
    e("s_waitcnt lgkmcnt(0)")
    for w in range(1, 8):
        e(f"v_add_f32 v32, v32, v{32+w}")
    round_bf16(32, 16)
    e("v_mul_f32 v33, 0xbfb8aa3b, v32")
    e("v_exp_f32 v33, v33")
    e("v_add_f32 v33, 1.0, v33")
    e("v_rcp_f32 v33, v33")
    e("v_mul_f32 v32, v32, v33")
    round_bf16(32, 16)
    e("s_mul_i32 s3, s30, 6")
    for k in range(6):
        e(f"s_add_u32 s4, s3, {k}")
        e(f"v_readlane_b32 s{56+k}, v32, s4")
    for p in range(3):
        e(f"s_lshr_b32 s{56+2*p}, s{56+2*p}, 16")
        e(f"s_and_b32 s{57+2*p}, s{57+2*p}, 0xffff0000")
        e(f"s_or_b32 s{56+2*p}, s{56+2*p}, s{57+2*p}")
    for p in range(3):
        for c in range(8):
            if p == 0: e(f"v_dot2_f32_bf16 v{32+c}, v{W2+c}, s56, 0")
            else: e(f"v_dot2_f32_bf16 v{32+c}, v{W2+8*p+c}, s{56+2*p}, v{32+c}")
    cr_write()
    cr_publish(WS_Z, pas)

def stage2_l1():
    gather(WS_Z, 0)
    e("s_mov_b32 s51, s52")
    q_tail(1)
    write_x()

def stage2_l2():
    sk = newlab()
    e("s_cmp_lg_u32 s52, s31")
    e(f"s_cbranch_scc1 {sk}")
    gather(WS_Z, 1)
    e("s_cmp_lg_u32 s30, 0")
    e(f"s_cbranch_scc1 {sk}")
    for j in range(4):
        e(f"v_cvt_pk_bf16_f32 v{20+j}, v{8+2*j}, v{9+2*j}")
    e("s_lshl_b32 s3, s52, 10")
    e("v_lshlrev_b32 v17, 4, v1")
    e("v_add_u32 v17, s3, v17")
    e("global_store_dwordx4 v17, v[20:23], s[24:25]")
    e.label(sk)

e("s_mov_b32 s51, 0")
e.label("L_ch_q1")
e("s_lshl_b32 s3, s51, 11")
e("v_lshlrev_b32 v4, 5, v1")
e("v_add_u32 v4, s3, v4")
e(f"ds_read_b128 v[8:11], v4 offset:{CX}")
e(f"ds_read_b128 v[12:15], v4 offset:{CX+16}")
e("s_waitcnt lgkmcnt(0)")
e("s_barrier")
q_tail(0)
e("s_add_u32 s51, s51, 1")
e("s_cmp_lt_u32 s51, 8")
e("s_cbranch_scc1 L_ch_q1")

e("s_mov_b32 s53, 0")
e.label("L_ch_loop")
def guarded(lo_ok, fn):
    sk = newlab()
    if lo_ok == "T":
        e("s_cmp_eq_u32 s53, 0")
        e(f"s_cbranch_scc1 {sk}")
        e("s_sub_u32 s52, s53, 1")
    else:
        e("s_cmp_eq_u32 s53, 8")
        e(f"s_cbranch_scc1 {sk}")
        e("s_mov_b32 s52, s53")
    fn()
    e.label(sk)
guarded("T", lambda: stage0(1))
guarded("S", lambda: stage0(0))
guarded("T", lambda: stage1(1))
guarded("S", lambda: stage1(0))
guarded("T", stage2_l2)
guarded("S", stage2_l1)
e("s_add_u32 s53, s53, 1")
e("s_cmp_lt_u32 s53, 9")
e("s_cbranch_scc1 L_ch_loop")
e.label("L_exit")
e("s_endpgm")

txt = HDR
txt += f"; @launch grid=(256,1,1) block=(512,1,1) lds={LDS_BYTES}\n"
txt += '.amdgcn_target "amdgcn-amd-amdhsa--gfx950"\n.text\n'
txt += e.text()
txt += f""".section .rodata,"a"
.p2align 6
.amdhsa_kernel {NAME}_kernel
  .amdhsa_next_free_vgpr 256
  .amdhsa_next_free_sgpr 80
  .amdhsa_accum_offset 256
  .amdhsa_group_segment_fixed_size 0
  .amdhsa_kernarg_size 88
  .amdhsa_user_sgpr_count 2
  .amdhsa_user_sgpr_kernarg_segment_ptr 1
  .amdhsa_system_sgpr_workgroup_id_x 1
.end_amdhsa_kernel
"""
dst = sys.argv[1] if len(sys.argv) > 1 else f"cdna_kernels/{NAME}.s"
open(dst, "w").write(txt)
print("wrote", dst, len(txt), "LDS", LDS_BYTES)
```
